```python
import torch

def _softmax(x, axis=-1):
    return torch.softmax(x, dim=axis)
def _gelu(x):
    return torch.nn.functional.gelu(x, approximate="tanh")
def _silu(x):
    return torch.nn.functional.silu(x)
def _sigmoid(x):
    return torch.sigmoid(x)
def _layernorm(x, axis=-1, eps=1e-5):
    m = x.mean(dim=axis, keepdim=True)
    v = x.var(dim=axis, keepdim=True, unbiased=False)
    return (x - m) / torch.sqrt(v + eps)
def _scatter_add(tgt, idx, src, axis=0):
    return tgt.clone().index_add_(axis, idx, src)
def _segment_sum(src, seg, n):
    out = torch.zeros((n,) + src.shape[1:], dtype=src.dtype)
    return out.index_add_(0, seg, src)
def _pad(x, pw):
    flat = tuple(v for pair in reversed(pw) for v in pair)
    return torch.nn.functional.pad(x, flat)

kernel_name = 'parallel_sum__compressed_kv_cla__glu_gated_reglu__prompt'

def setup_inputs():

    _w = (lambda a: (lambda t: t.to(torch.bfloat16) if t.is_floating_point() else t)(torch.as_tensor(a)))
    def _A_setup():
        B, H, Sq, Sk, D, M = 1, 32, 2048, 2048, 128, 512
        Dc = 4 * D
        return {
            "x": _w((lambda *s: torch.randn(*s, dtype=torch.bfloat16) * 0.05)(B, Sq, M)),
            "c_kv": _w((lambda *s: torch.randn(*s, dtype=torch.bfloat16) * 0.4)(B, Sk, Dc)),
            "w_q": _w((lambda *s: torch.randn(*s, dtype=torch.bfloat16) * 1.6)(M, H, D) * (M ** -0.5)),
            "w_uk": _w((lambda *s: torch.randn(*s, dtype=torch.bfloat16) * 1.6)(Dc, H, D) * (Dc ** -0.5)),
            "w_uv": _w((lambda *s: torch.randn(*s, dtype=torch.bfloat16) * 0.4)(Dc, H, D) * (Dc ** -0.5)),
            "w_o": _w((lambda *s: torch.randn(*s, dtype=torch.bfloat16) * 0.4)(H, D, M) * ((H * D) ** -0.5)),
        }
    _A_in = _A_setup()

    def _B_setup():
        B, S, D, F = 1, 2048, 512, 1376
        return {
            "x": _w((lambda *s: torch.randn(*s, dtype=torch.bfloat16) * 0.05)(B, S, D)),
            "W_gate": _w((lambda *s: torch.randn(*s, dtype=torch.bfloat16) * 0.2)(D, F) * (2.0 / D) ** 0.5),
            "W_up": _w((lambda *s: torch.randn(*s, dtype=torch.bfloat16) * 0.2)(D, F) * (2.0 / D) ** 0.5),
            "W_down": _w((lambda *s: torch.randn(*s, dtype=torch.bfloat16) * 0.2)(F, D) * (1.0 / F) ** 0.5),
        }
    _B_in = _B_setup()

    return {
        "A_x": _A_in["x"],
        "A_c_kv": _A_in["c_kv"],
        "A_w_q": _A_in["w_q"],
        "A_w_uk": _A_in["w_uk"],
        "A_w_uv": _A_in["w_uv"],
        "A_w_o": _A_in["w_o"],
        "B_x": _B_in["x"],
        "B_W_gate": _B_in["W_gate"],
        "B_W_up": _B_in["W_up"],
        "B_W_down": _B_in["W_down"],
    }

def reference(A_x, A_c_kv, A_w_q, A_w_uk, A_w_uv, A_w_o, B_x, B_W_gate, B_W_up, B_W_down):
    def _A_ref(x, c_kv, w_q, w_uk, w_uv, w_o):
        B, Sq, M = x.shape[0], x.shape[1], x.shape[2]
        Sk = c_kv.shape[1]
        H, D = w_q.shape[1], w_q.shape[2]
        q = torch.einsum("bqm,mhd->bhqd", x, w_q)
        k = torch.einsum("bkc,chd->bhkd", c_kv, w_uk)
        v = torch.einsum("bkc,chd->bhkd", c_kv, w_uv)
        scores = torch.einsum("bhqd,bhkd->bhqk", q, k) * (D ** -0.5)
        off = Sk - Sq
        qi = torch.arange(Sq)[:, None]
        kj = torch.arange(Sk)[None, :]
        cmask = kj <= (qi + off)
        scores = torch.where(cmask[None, None], scores, -1e9)
        p = _softmax(scores, axis=-1)
        ctx = torch.einsum("bhqk,bhkd->bhqd", p, v)
        return torch.einsum("bhqd,hdm->bqm", ctx, w_o)

    def _B_ref(x, W_gate, W_up, W_down):
        gate = torch.einsum("bsd,df->bsf", x, W_gate)
        up = torch.einsum("bsd,df->bsf", x, W_up)
        gate = gate * (lambda x, dt: x.to(dt))(gate > 0, gate.dtype)
        h = gate * up
        return torch.einsum("bsf,fd->bsd", h, W_down)

    x = A_x
    xn = _layernorm(x, axis=-1)
    return x + _A_ref(xn, A_c_kv, A_w_q, A_w_uk, A_w_uv, A_w_o) + _B_ref(xn, B_W_gate, B_W_up, B_W_down)
```

```python
import re

TRANS = ("v_exp_f32", "v_log_f32", "v_rcp_f32", "v_rsq_f32", "v_sqrt_f32", "v_sin_f32", "v_cos_f32")

def regs_of(tok):
    tok = tok.strip()
    tok = tok.lstrip('-')
    if tok.startswith('abs(') or tok.startswith('|'):
        tok = tok.replace('abs(', '').replace(')', '').replace('|', '')
    m = re.fullmatch(r'([vsa])\[(\d+):(\d+)\]', tok)
    if m:
        return [f"{m.group(1)}{i}" for i in range(int(m.group(2)), int(m.group(3)) + 1)]
    m = re.fullmatch(r'([vsa])(\d+)', tok)
    if m:
        return [tok]
    if tok in ('vcc', 'exec', 'm0', 'scc'):
        return [tok]
    if tok in ('vcc_lo', 'vcc_hi'):
        return ['vcc']
    if tok in ('exec_lo', 'exec_hi'):
        return ['exec']
    return []

class Ins:
    __slots__ = ("text", "op", "kind", "dst", "src", "srcc", "ab", "states", "comment")
    def __init__(self, text):
        self.text = text
        t = text.split(';')[0].strip()
        self.op = t.split()[0] if t else ''
        rest = t[len(self.op):].strip()
        ops = [o.strip() for o in rest.split(',')] if rest else []
        ops2 = []
        for o in ops:
            ops2.append(o.split()[0] if o else o)
        self.dst, self.src, self.srcc, self.ab = [], [], [], []
        self.states = 1
        op = self.op
        if op.endswith(':') or op.startswith('.') or op == '':
            self.kind = 'label' if op.endswith(':') else 'dir'
            self.states = 0
        elif op.startswith('v_mfma'):
            self.kind = 'mfma'
            self.dst = regs_of(ops2[0]); self.ab = regs_of(ops2[1]) + regs_of(ops2[2]); self.srcc = regs_of(ops2[3])
            self.src = self.ab + self.srcc
        elif op.startswith('v_cmp'):
            self.kind = 'valu'
            self.dst = regs_of(ops2[0]); self.src = sum((regs_of(o) for o in ops2[1:]), [])
        elif op.startswith('v_permlane'):
            self.kind = 'valu'
            self.dst = regs_of(ops2[0]) + regs_of(ops2[1]); self.src = list(self.dst)
        elif op.startswith('v_'):
            self.kind = 'valu'
            self.dst = regs_of(ops2[0]); self.src = sum((regs_of(o) for o in ops2[1:]), [])
            if op.startswith('v_fmac') or op.startswith('v_dot2c'):
                self.src += self.dst
            if op.startswith('v_cndmask') and len(ops2) == 3:
                self.src.append('vcc')
            if '_co_' in op:
                self.dst += regs_of(ops2[1])
        elif op.startswith('ds_read') or op.startswith('ds_bpermute') or op.startswith('ds_swizzle') or op.startswith('ds_permute'):
            self.kind = 'ds'
            self.dst = regs_of(ops2[0]); self.src = sum((regs_of(o) for o in ops2[1:]), [])
        elif op.startswith('ds_'):
            self.kind = 'ds'
            self.src = sum((regs_of(o) for o in ops2), [])
        elif op.startswith('buffer_') or op.startswith('global_'):
            self.kind = 'vmem'
            islds = bool(re.search(r'\blds\b', t)) or '_lds_' in op
            if 'load' in op and not islds:
                self.dst = regs_of(ops2[0]); self.src = sum((regs_of(o) for o in ops2[1:]), [])
            else:
                self.src = sum((regs_of(o) for o in ops2), [])
                if islds: self.src.append('m0')
        elif op == 's_nop':
            self.kind = 'salu'; self.states = int(ops2[0], 0) + 1
        elif op.startswith('s_'):
            self.kind = 'salu'
            if op.startswith('s_cmp') or op.startswith('s_cbranch') or op in ('s_branch', 's_barrier', 's_waitcnt', 's_endpgm', 's_setprio', 's_sleep', 's_bitcmp1_b32', 's_bitcmp0_b32'):
                self.src = sum((regs_of(o) for o in ops2), [])
            else:
                self.dst = regs_of(ops2[0]) if ops2 else []
                self.src = sum((regs_of(o) for o in ops2[1:]), [])
        else:
            raise ValueError("unknown instruction: " + text)

def required_states(p, c):
    need = 0
    pd, cs, cd = set(p.dst), set(c.src), set(c.dst)
    if p.kind == 'mfma':
        passes = 8 if '32x32x16' in p.op else 4
        big = {8: 12, 4: 8}[passes]; ovl = {8: 10, 4: 6}[passes]; war = {8: 7, 4: 3}[passes]
        if c.kind == 'mfma':
            if pd & set(c.ab): need = max(need, big)
            if pd & set(c.srcc):
                if not (p.dst == c.srcc and p.op == c.op): need = max(need, ovl)
            if (pd & cd) and not (p.dst == c.srcc and p.op == c.op): need = max(need, ovl)
        elif c.kind in ('valu', 'vmem', 'ds'):
            if pd & (cs | cd): need = max(need, big)
            if c.kind == 'valu' and (set(p.srcc) & cd): need = max(need, war)
            if c.kind in ('vmem', 'ds') and (set(p.srcc) & cd): need = max(need, war)
    elif p.kind == 'valu':
        pv = {r for r in pd if r[0] in 'va' and r != 'vcc'}
        ps = {r for r in pd if r[0] == 's' or r == 'vcc'}
        if c.kind == 'mfma':
            if pv & cs: need = max(need, 2)
            if 'exec' in pd: need = max(need, 4)
        if c.kind == 'valu':
            if p.op in TRANS and c.op not in TRANS and (pv & cs): need = max(need, 1)
            if p.op in TRANS and (pv & (cs|cd)): need = max(need, 1)
            if c.op.startswith('v_permlane') and (pv & cs): need = max(need, 2)
            if (c.op.startswith('v_readlane') or c.op.startswith('v_readfirstlane')) and (pv & cs): need = max(need, 1)
            if ps & cs:
                need = max(need, 4 if (c.op.startswith('v_readlane') or c.op.startswith('v_writelane')) else 2)
            if 'dpp' in c.text or 'quad_perm' in c.text or 'row_' in c.text:
                if pv & cs: need = max(need, 2)
        if c.kind == 'vmem' and (ps & cs): need = max(need, 5)
        if c.kind == 'salu' and (ps & cs) and not c.op.startswith('s_cbranch'): need = max(need, 1)
    elif p.kind == 'salu':
        if 'm0' in pd and c.kind == 'vmem' and 'm0' in cs: need = max(need, 1)
    elif p.kind == 'vmem':
        if ('store' in p.op) and ('x4' in p.op or 'x3' in p.op):
            data = set(regs_of(p.text.split()[1].rstrip(',')))
            if p.op.startswith('global_store'):
                data = set(regs_of(p.text.split(',')[1].strip()))
            if data & cd: need = max(need, 2)
    return need

WINDOW = 24

def fix_hazards(ins_list, prefix=None):
    out = list(prefix) if prefix else []
    npre = len(out)
    inserted = 0
    for c in ins_list:
        if c.kind in ('label', 'dir'):
            out.append(c); continue
        need_extra = 0
        dist = 0
        for p in reversed(out[-WINDOW*2:]):
            if p.kind in ('label', 'dir'): continue
            req = required_states(p, c)
            if req > dist: need_extra = max(need_extra, req - dist)
            dist += p.states
            if dist >= 20: break
        while need_extra > 0:
            n = min(need_extra, 16)
            out.append(Ins(f"s_nop {n-1}")); need_extra -= n; inserted += 1
        out.append(c)
    return out[npre:], inserted

class Block:
    def __init__(self, name=None):
        self.ins = []
        self.name = name
    def e(self, text):
        for line in text.strip().split('\n'):
            line = line.strip()
            if line and not line.startswith(';'):
                self.ins.append(Ins(line))
        return self
    def label(self, l):
        self.ins.append(Ins(l + ':'))
    def extend(self, other):
        self.ins.extend(other.ins if isinstance(other, Block) else other)
    def fixed(self, prefix=None):
        self.ins, n = fix_hazards(self.ins, prefix)
        return n
    def text(self):
        out = []
        for i in self.ins:
            out.append(i.text if i.kind in ('label', 'dir') else "    " + i.text)
        return "\n".join(out) + "\n"

def seam_pad(prev, nxt):
    tail = [i for i in prev.ins if i.kind not in ('label', 'dir')][-WINDOW:]
    head = [i for i in nxt.ins if i.kind not in ('label', 'dir')][:WINDOW]
    worst = 0
    dist_c = 0
    for ci, c in enumerate(head):
        dist = dist_c
        for p in reversed(tail):
            req = required_states(p, c)
            if req > dist: worst = max(worst, req - dist)
            dist += p.states
            if dist >= 20: break
        dist_c += c.states
        if dist_c >= 20: break
    return worst

def vr(a, n=1):
    return f"v{a}" if n == 1 else f"v[{a}:{a+n-1}]"
def sr(a, n=1):
    return f"s{a}" if n == 1 else f"s[{a}:{a+n-1}]"

class Q:
    def __init__(self, name, maxv):
        self.name, self.maxv = name, maxv
        self.q = []
    def issue(self, tag):
        self.q.append(tag)
        assert len(self.q) <= self.maxv + 1, f"{self.name} overflow {len(self.q)}"
    def need(self, tag):
        if tag not in self.q: return None
        idx = len(self.q) - 1 - self.q[::-1].index(tag)
        n = len(self.q) - 1 - idx
        self.q = self.q[idx+1:]
        return n
    def wait(self, blk, tag):
        n = self.need(tag)
        if n is not None:
            blk.e(f"s_waitcnt {self.name}({n})")
```

```python
import sys, math, struct
from asmlib import *

NAME = "parallel_sum__compressed_kv_cla__glu_gated_reglu__prompt"
XN_OFF  = 0
KF_OFF  = 0x200000
VF_OFF  = KF_OFF + 0x1000000
ACT_OFF = VF_OFF + 0x1000000
NKS3 = 342
ACT_END = ACT_OFF + 64 * NKS3 * 1024
WS_SIZE = 0x4000000
SLOT = 32768
NSLOT = 5
LDS_BYTES = SLOT * NSLOT

def f32(x):
    return "0x%08x" % struct.unpack("<I", struct.pack("<f", x))[0]

def srd(b, d, ptr, size):
    b.e(f"""s_mov_b32 s{d}, s{ptr}
            s_and_b32 s{d+1}, s{ptr+1}, 0xffff
            s_mov_b32 s{d+2}, {size}
            s_mov_b32 s{d+3}, 0x20000""")

MFMA = "v_mfma_f32_32x32x16_bf16"

class GStage:
    def __init__(self, gidx, fmt, ks0, accs, first, w_is_a, dma):
        self.gidx, self.fmt, self.ks0, self.accs, self.first, self.w_is_a, self.dma = gidx, fmt, ks0, accs, first, w_is_a, dma
        self.slot = (gidx % NSLOT) * SLOT
    def mf(self):
        ncb = {'P256': 4, 'P128': 2, 'FFN': 1}[self.fmt]
        nks = 32 // ncb
        out = []
        for k in range(nks):
            for cb in range(ncb):
                out.append((cb, k))
        return out

def tr_base_setup(b, fmt, vbase, vlane, vt, slot):
    r, t, u = vt[fmt]
    b.e(f"v_bfe_u32 v{r}, v{vlane}, 2, 2")
    b.e(f"v_and_b32 v{t}, 3, v{vlane}")
    b.e(f"v_lshlrev_b32 v{t}, 3, v{t}")
    if fmt in ('P256', 'P128'):
        sh = 8 if fmt == 'P256' else 7
        b.e(f"v_bfe_u32 v{u}, v{vlane}, 4, 1")
        b.e(f"v_lshl_add_u32 v{t}, v{u}, 5, v{t}")
        b.e(f"v_lshrrev_b32 v{u}, 5, v{vlane}")
        b.e(f"v_lshl_add_u32 v{u}, v{u}, 3, v{r}")
        b.e(f"v_lshl_add_u32 v{t}, v{u}, {sh}, v{t}")
        b.e(f"v_add_u32 v{t}, {slot}, v{t}")
        if fmt == 'P128':
            b.e(f"v_lshrrev_b32 v{r}, 1, v{r}")
        ncb = 4 if fmt == 'P256' else 2
        for cb in range(ncb):
            b.e(f"v_xor_b32 v{vbase+cb}, {cb}, v{r}")
            b.e(f"v_lshl_add_u32 v{vbase+cb}, v{vbase+cb}, 6, v{t}")
    else:
        b.e(f"v_lshrrev_b32 v{u}, 5, v{vlane}")
        b.e(f"v_lshl_add_u32 v{u}, v{u}, 3, v{r}")
        b.e(f"v_lshl_add_u32 v{t}, v{u}, 5, v{t}")
        b.e(f"v_add_u32 v{t}, {slot}, v{t}")
        b.e(f"v_bfe_u32 v{u}, v{vlane}, 4, 1")
        b.e(f"v_mul_u32_u24 v{r}, {16384+128}, v{u}")
        b.e(f"v_add_u32 v{vbase}, v{t}, v{r}")
        b.e(f"v_mul_u32_u24 v{r}, {16384-128}, v{u}")
        b.e(f"v_add_u32 v{r}, 128, v{r}")
        b.e(f"v_add_u32 v{vbase+1}, v{t}, v{r}")

def tr_reads(fmt, vbase, cb, k, buf):
    if fmt == 'P256':
        return [f"ds_read_b64_tr_b16 v[{buf}:{buf+1}], v{vbase+cb} offset:{(16*k)*256}",
                f"ds_read_b64_tr_b16 v[{buf+2}:{buf+3}], v{vbase+cb} offset:{(16*k+4)*256}"]
    if fmt == 'P128':
        return [f"ds_read_b64_tr_b16 v[{buf}:{buf+1}], v{vbase+cb} offset:{(16*k)*128}",
                f"ds_read_b64_tr_b16 v[{buf+2}:{buf+3}], v{vbase+cb} offset:{(16*k+4)*128}"]
    return [f"ds_read_b64_tr_b16 v[{buf}:{buf+1}], v{vbase} offset:{512*k}",
            f"ds_read_b64_tr_b16 v[{buf+2}:{buf+3}], v{vbase+1} offset:{512*k}"]

def gemm_phase(b, vm, lg, stages, all_dma, act0, wbuf, nbuf, pd, vbase, vlane, vt, fillers, act_tag, tail_hook=None):
    ents = []
    for si, st in enumerate(stages):
        for n, (cb, k) in enumerate(st.mf()):
            ents.append((si, st, cb, k, n))
    nE = len(ents)
    rd = 0
    cur_fmt_slot = [None]
    pend = []
    def open_stage(si):
        st = stages[si]
        vm.wait(b, ('dma', st.gidx))
        b.e("s_barrier")
        prev = cur_fmt_slot[0]
        if prev is None or prev[0] != st.fmt:
            tr_base_setup(b, st.fmt, vbase, vlane, vt, st.slot)
        else:
            nb = {'P256': 4, 'P128': 2, 'FFN': 2}[st.fmt]
            d = (st.slot - prev[1]) & 0xffffffff
            for i in range(nb):
                b.e(f"v_add_u32 v{vbase+i}, {d}, v{vbase+i}")
        cur_fmt_slot[0] = (st.fmt, st.slot)
        g = st.gidx + 3
        if g in all_dma:
            pend.extend(all_dma.pop(g))
    def issue_read(i):
        si, st, cb, k, n = ents[i]
        if n == 0: open_stage(si)
        buf = wbuf + 4 * (i % nbuf)
        for t in tr_reads(st.fmt, vbase, cb, k, buf):
            b.e(t); lg.issue(('w', i))
    tail_done = False
    tail_reads = []
    for i in range(min(pd, nE)):
        issue_read(i); rd += 1
    for i in range(nE):
        si, st, cb, k, n = ents[i]
        if n == 0 and ('pre', si) in fillers:
            for t, tag in fillers[('pre', si)]:
                b.e(t)
                if tag is not None: vm.issue(tag)
        if n == 0 and si in fillers:
            pend.extend(fillers[si])
        ks = st.ks0 + k
        vm.wait(b, (act_tag, ks))
        lg.wait(b, ('w', i))
        buf = wbuf + 4 * (i % nbuf)
        acc = st.accs[cb]
        c = "0" if (st.first and k == 0) else vr(acc, 16)
        wf, af = vr(buf, 4), vr(act0 + 4 * ks, 4)
        if st.w_is_a: b.e(f"{MFMA} {vr(acc,16)}, {wf}, {af}, {c}")
        else:         b.e(f"{MFMA} {vr(acc,16)}, {af}, {wf}, {c}")
        if rd < nE:
            issue_read(rd); rd += 1
        elif tail_hook is not None:
            if not tail_done:
                tail_reads = tail_hook(b, pend); tail_done = True
            if tail_reads:
                t, tag = tail_reads.pop(0); b.e(t); lg.issue(tag)
        left = 32 - n
        take = -(-len(pend) // left) if pend else 0
        take = min(max(take, min(len(pend), 2)), len(pend))
        for _ in range(take):
            t, tag = pend.pop(0)
            b.e(t)
            if tag is not None: vm.issue(tag)
    for t, tag in pend:
        b.e(t)
        if tag is not None: vm.issue(tag)
    for t, tag in tail_reads:
        b.e(t); lg.issue(tag)

def dma_p(stage_gidx, fmt, vdma, srdw, s_w4096, s_tmp, row0, colbyte, ld):
    slot = (stage_gidx % NSLOT) * SLOT
    rows = 4 if fmt == 'P256' else 8
    ops = [(f"s_add_u32 m0, s{s_w4096}, {slot}", None)]
    for n in range(4):
        so = (row0 + rows * n) * ld + colbyte - n * 1024
        ops.append((f"s_mov_b32 s{s_tmp}, {so}", None))
        ops.append((f"buffer_load_dwordx4 v{vdma}, {sr(srdw,4)}, s{s_tmp} offen offset:{n*1024} lds", ('dma', stage_gidx)))
    return ops

def dma_voff_p(b, fmt, vd, vlane, vt, s_wave, s_h256, ld):
    if fmt == 'P256':
        b.e(f"v_lshrrev_b32 v{vt}, 4, v{vlane}")
        b.e(f"v_and_b32 v{vt+1}, 15, v{vlane}")
        b.e(f"v_lshlrev_b32 v{vt+2}, 2, v{vt}")
        b.e(f"v_xor_b32 v{vt+1}, v{vt+1}, v{vt+2}")
        wrows = 16
    else:
        b.e(f"v_lshrrev_b32 v{vt}, 3, v{vlane}")
        b.e(f"v_and_b32 v{vt+1}, 7, v{vlane}")
        b.e(f"v_bfe_u32 v{vt+2}, v{vlane}, 4, 1")
        b.e(f"v_lshlrev_b32 v{vt+2}, 2, v{vt+2}")
        b.e(f"v_xor_b32 v{vt+1}, v{vt+1}, v{vt+2}")
        wrows = 32
    b.e(f"v_mov_b32 v{vt+2}, s{s_wave}")
    b.e(f"v_mad_u32_u24 v{vt}, v{vt+2}, {wrows}, v{vt}")
    b.e(f"v_mul_u32_u24 v{vt}, {ld}, v{vt}")
    b.e(f"v_lshl_add_u32 v{vt}, v{vt+1}, 4, v{vt}")
    b.e(f"v_add_u32 v{vd}, s{s_h256}, v{vt}")

def wave_sum(b, v, vt, s0):
    b.e(f"v_add_f32_dpp v{vt}, v{v}, v{v} quad_perm:[1,0,3,2] row_mask:0xf bank_mask:0xf")
    b.e(f"v_add_f32_dpp v{v}, v{vt}, v{vt} quad_perm:[2,3,0,1] row_mask:0xf bank_mask:0xf")
    b.e(f"v_add_f32_dpp v{vt}, v{v}, v{v} row_half_mirror row_mask:0xf bank_mask:0xf")
    b.e(f"v_add_f32_dpp v{v}, v{vt}, v{vt} row_mirror row_mask:0xf bank_mask:0xf")
    for i in range(4):
        b.e(f"v_readlane_b32 s{s0+i}, v{v}, {16*i}")
    b.e(f"v_mov_b32 v{v}, s{s0}")
    for i in range(1, 4):
        b.e(f"v_add_f32 v{v}, s{s0+i}, v{v}")

def round_bf16(b, v):
    b.e(f"v_cvt_pk_bf16_f32 v{v}, v{v}, v{v}")
    b.e(f"v_lshlrev_b32 v{v}, 16, v{v}")

def kd(name, vgpr=256, sgpr=102):
    return f""".section .rodata,"a"
.p2align 6
.amdhsa_kernel {name}
  .amdhsa_next_free_vgpr {vgpr}
  .amdhsa_next_free_sgpr {sgpr}
  .amdhsa_accum_offset {vgpr}
  .amdhsa_group_segment_fixed_size 0
  .amdhsa_kernarg_size 104
  .amdhsa_user_sgpr_count 2
  .amdhsa_user_sgpr_kernarg_segment_ptr 1
  .amdhsa_system_sgpr_workgroup_id_x 1
.end_amdhsa_kernel
.text
"""

def khead(name):
    return f".globl {name}\n.p2align 8\n.type {name},@function\n{name}:\n"

def gen_k1():
    b = Block('k1')
    vm, lg = Q('vmcnt', 63), Q('lgkmcnt', 15)
    S_X, S_C, S_WK, S_WV, S_WS = 16, 20, 24, 28, 32
    s_h, s_rb, s_w, s_w4096, s_h256, s_t, s_kst, s_kst2, s_vst, s_vst2 = 36, 37, 38, 39, 40, 41, 42, 43, 44, 45
    ACT, ACCK, ACCV, WB, VB = 0, 128, 192, 224, 248
    v_dk, v_dv, v_l16, v_lane = 252, 253, 254, 255
    T = ACCV
    b.e(f"""s_cmp_ge_u32 s2, 256
            s_cbranch_scc1 K1_end
            s_load_dwordx4 s[4:7], s[0:1], 0
            s_load_dwordx4 s[8:11], s[0:1], 24
            s_load_dwordx2 s[12:13], s[0:1], 96
            v_lshrrev_b32 v{T}, 6, v0
            v_and_b32 v{v_lane}, 63, v0
            s_and_b32 s{s_t}, s2, 7
            v_readfirstlane_b32 s{s_w}, v{T}
            s_lshr_b32 s{s_rb}, s2, 3
            s_and_b32 s{s_h}, s{s_rb}, 3
            s_lshl_b32 s{s_t}, s{s_t}, 2
            s_add_u32 s{s_h}, s{s_h}, s{s_t}
            s_lshr_b32 s{s_rb}, s{s_rb}, 2
            s_lshl_b32 s{s_w4096}, s{s_w}, 12
            s_lshl_b32 s{s_h256}, s{s_h}, 8
            v_lshlrev_b32 v{v_l16}, 4, v{v_lane}
            s_waitcnt lgkmcnt(0)""")
    srd(b, S_X, 4, 2097152); srd(b, S_C, 6, 2097152); srd(b, S_WK, 8, 4194304); srd(b, S_WV, 10, 4194304); srd(b, S_WS, 12, WS_SIZE)
    XR = T + 8
    b.e(f"""s_lshl_b32 s{s_t}, s2, 3
            s_add_u32 s{s_t}, s{s_t}, s{s_w}
            s_lshl_b32 s46, s{s_t}, 10
            buffer_load_dwordx4 {vr(XR,4)}, v{v_l16}, {sr(S_X,4)}, s46 offen""")
    vm.issue('x')
    b.e(f"s_mov_b32 s47, s{s_t}")
    dma_voff_p(b, 'P256', v_dk, v_lane, T, s_w, s_h256, 8192)
    dma_voff_p(b, 'P128', v_dv, v_lane, T, s_w, s_h256, 8192)
    va = T + 4
    b.e(f"""s_lshl_b32 s{s_t}, s{s_rb}, 3
            s_add_u32 s{s_t}, s{s_t}, s{s_w}
            s_lshl_b32 s48, s{s_t}, 15
            v_and_b32 v{va}, 31, v{v_lane}
            v_lshlrev_b32 v{va}, 10, v{va}
            v_lshrrev_b32 v{T}, 5, v{v_lane}
            v_lshl_add_u32 v{va}, v{T}, 4, v{va}
            s_lshl_b32 s{s_kst}, s{s_h}, 6
            s_add_u32 s{s_kst}, s{s_kst}, s{s_t}
            s_lshl_b32 s{s_kst}, s{s_kst}, 13
            s_add_u32 s{s_vst}, s{s_kst}, {VF_OFF}
            s_add_u32 s{s_kst}, s{s_kst}, {KF_OFF}
            s_add_u32 s{s_kst2}, s{s_kst}, 4096
            s_add_u32 s{s_vst2}, s{s_vst}, 4096""")
    stages = []
    for s in range(4):
        stages.append(GStage(s, 'P256', 8 * s, [ACCK + 16 * c for c in range(4)], s == 0, True, None))
    for cp in range(2):
        accs = [ACCV, ACCV + 16] if cp == 0 else [ACCK, ACCK + 16]
        for kh in range(2):
            stages.append(GStage(4 + 2 * cp + kh, 'P128', 16 * kh, accs, kh == 0, False, None))
    dm = {}
    for s in range(4):
        dm[s] = dma_p(s, 'P256', v_dk, S_WK, s_w4096, s_t, 128 * s, 0, 8192)
    for cp in range(2):
        for kh in range(2):
            dm[4 + 2 * cp + kh] = dma_p(4 + 2 * cp + kh, 'P128', v_dv, S_WV, s_w4096, s_t, 256 * kh, 128 * cp, 8192)
    for s in range(3):
        for t, tag in dm.pop(s):
            b.e(t)
            if tag: vm.issue(tag)
        for ks in range(8 * s, 8 * s + 8):
            b.e(f"buffer_load_dwordx4 {vr(ACT+4*ks,4)}, v{va}, {sr(S_C,4)}, s48 offen offset:{32*ks}")
            vm.issue(('a', ks))
    for ks in range(24, 32):
        b.e(f"buffer_load_dwordx4 {vr(ACT+4*ks,4)}, v{va}, {sr(S_C,4)}, s48 offen offset:{32*ks}")
        vm.issue(('a', ks))
    X = T + 12
    M, V2, TT = T + 20, T + 21, T + 22
    vm.wait(b, 'x')
    for i in range(4):
        b.e(f"v_lshlrev_b32 v{X+2*i}, 16, v{XR+i}")
        b.e(f"v_and_b32 v{X+2*i+1}, 0xffff0000, v{XR+i}")
    b.e(f"v_add_f32 v{M}, v{X}, v{X+1}")
    for i in range(2, 8): b.e(f"v_add_f32 v{M}, v{M}, v{X+i}")
    wave_sum(b, M, TT, 50)
    b.e(f"v_mul_f32 v{M}, {f32(1/512)}, v{M}")
    D = T + 24
    for i in range(8): b.e(f"v_sub_f32 v{D+i}, v{X+i}, v{M}")
    b.e(f"v_mul_f32 v{V2}, v{D}, v{D}")
    for i in range(1, 8): b.e(f"v_fmac_f32 v{V2}, v{D+i}, v{D+i}")
    wave_sum(b, V2, TT, 50)
    b.e(f"v_mul_f32 v{V2}, {f32(1/512)}, v{V2}")
    round_bf16(b, V2)
    b.e(f"v_add_f32 v{V2}, {f32(1e-5)}, v{V2}")
    round_bf16(b, V2)
    b.e(f"v_sqrt_f32 v{V2}, v{V2}")
    round_bf16(b, V2)
    b.e(f"v_rcp_f32 v{V2}, v{V2}")
    round_bf16(b, M)
    for i in range(8): b.e(f"v_sub_f32 v{D+i}, v{X+i}, v{M}")
    for i in range(4):
        b.e(f"v_cvt_pk_bf16_f32 v{XR+i}, v{D+2*i}, v{D+2*i+1}")
    for i in range(4):
        b.e(f"v_lshlrev_b32 v{D+2*i}, 16, v{XR+i}")
        b.e(f"v_and_b32 v{D+2*i+1}, 0xffff0000, v{XR+i}")
    for i in range(8): b.e(f"v_mul_f32 v{D+i}, v{D+i}, v{V2}")
    for i in range(4):
        b.e(f"v_cvt_pk_bf16_f32 v{XR+i}, v{D+2*i}, v{D+2*i+1}")
    b.e(f"""v_lshrrev_b32 v{T}, 1, v{v_lane}
            v_lshlrev_b32 v{T}, 10, v{T}
            v_and_b32 v{T+1}, 1, v{v_lane}
            v_lshl_add_u32 v{T}, v{T+1}, 9, v{T}
            s_lshr_b32 s46, s47, 5
            s_lshl_b32 s46, s46, 15
            s_and_b32 s47, s47, 31
            s_lshl_b32 s47, s47, 4
            s_add_u32 s46, s46, s47
            buffer_store_dwordx4 {vr(XR,4)}, v{T}, {sr(S_WS,4)}, s46 offen""")
    vm.issue('xn')
    def epi(acc, frag0, sa, sb, stride_frag):
        ops = []
        for half in range(2):
            a = acc + 8 * half
            for i in range(4):
                ops.append((f"v_cvt_pk_bf16_f32 v{a+i}, v{a+2*i}, v{a+2*i+1}", None))
            f = frag0 + half * stride_frag
            so, off = (sa, f * 1024) if f < 4 else (sb, (f - 4) * 1024)
            ops.append((f"buffer_store_dwordx4 {vr(a,4)}, v{v_l16}, {sr(S_WS,4)}, s{so} offen offset:{off}", 'st'))
        return ops
    fill = {4: sum((epi(ACCK + 16 * cb, 2 * cb, s_kst, s_kst2, 1) for cb in range(4)), []),
            6: sum((epi(ACCV + 16 * c, c, s_vst, s_vst2, 4) for c in range(2)), [])}
    gemm_phase(b, vm, lg, stages, dm, ACT, WB, 6, 4, VB, v_lane, {'P256': (T+1, T+2, T+3), 'P128': (VB+2, VB+3, VB)}, fill, 'a')
    for t, tag in sum((epi(ACCK + 16 * c, 2 + c, s_vst, s_vst2, 4) for c in range(2)), []):
        b.e(t)
    b.label("K1_end")
    b.e("s_endpgm")
    n = b.fixed()
    return b


class K2:
    S_WQ, S_WG, S_WU, S_WS = 16, 20, 24, 28
    s_h, s_i, s_w, s_w4096, s_h256, s_t, s_g, s_nfull = 36, 37, 38, 39, 40, 41, 42, 43
    s_rd, s_wr, s_koff, s_voff, s_j, s_nT, s_thr, s_act, s_act2, s_w2048 = 44, 45, 46, 47, 48, 49, 50, 51, 52, 53
    s_fb = 54
    s_hst = 57
    s_t2 = 60
    XN = 0
    O, S0, S1, NEGM, P0, P1 = 0, 64, 80, 96, 112, 120
    ACC, QF, FA, FB = 128, 128, 160, 160
    WB = 192
    ET = 192
    XT = 200
    VB = 224
    v_dq, v_dg, v_du, v_l16, v_lane, v_l, v_ts, v_fb, v_thr = 228, 229, 230, 231, 232, 233, 234, 235, 236
    T = 240
    PD, NB = 4, 8
    THR = 256.0

    def kv_dma(self):
        ops = [(f"s_add_u32 m0, s{self.s_wr}, s{self.s_w4096}", None)]
        for n in range(4):
            ops.append((f"buffer_load_dwordx4 v{self.v_l16}, {sr(self.S_WS,4)}, s{self.s_koff} offen offset:{n*1024} lds", 'kv'))
        ops.append((f"s_add_u32 m0, m0, 16384", None))
        ops.append((f"s_add_u32 s{self.s_koff}, s{self.s_koff}, 16384", None))
        for n in range(4):
            ops.append((f"buffer_load_dwordx4 v{self.v_l16}, {sr(self.S_WS,4)}, s{self.s_voff} offen offset:{n*1024} lds", 'kv'))
        ops.append((f"s_add_u32 s{self.s_voff}, s{self.s_voff}, 16384", None))
        ops.append((f"s_add_u32 s{self.s_wr}, s{self.s_wr}, {SLOT}", None))
        ops.append((f"s_cmp_eq_u32 s{self.s_wr}, {LDS_BYTES}", None))
        ops.append((f"s_cselect_b32 s{self.s_wr}, 0, s{self.s_wr}", None))
        return ops

    def adv_rd(self):
        return [f"s_add_u32 s{self.s_rd}, s{self.s_rd}, {SLOT}",
                f"s_cmp_eq_u32 s{self.s_rd}, {LDS_BYTES}",
                f"s_cselect_b32 s{self.s_rd}, 0, s{self.s_rd}",
                f"v_add_u32 v{self.v_fb}, s{self.s_rd}, v{self.v_l16}"]

    def kread(self, u, s, buf):
        return f"ds_read_b128 {vr(buf,4)}, v{self.v_fb} offset:{u*8192 + s*1024}"
    def vread(self, u, s2, db, buf):
        return f"ds_read_b128 {vr(buf,4)}, v{self.v_fb} offset:{16384 + u*8192 + (s2*4+db)*1024}"

    def sm_fast(self, S, P):
        out = []
        ts = self.v_ts
        for k in range(8):
            t0, t1 = self.ET + (2 * k) % 8, self.ET + (2 * k + 1) % 8
            out.append(f"v_exp_f32 v{t0}, v{S+2*k}")
            out.append(f"v_exp_f32 v{t1}, v{S+2*k+1}")
            if k == 0:
                out.append(f"v_add_f32 v{ts}, v{t0}, v{t1}")
            else:
                out.append(f"v_add_f32 v{ts}, v{ts}, v{t0}")
                out.append(f"v_add_f32 v{ts}, v{ts}, v{t1}")
            out.append(f"v_cvt_pk_bf16_f32 v{P+k}, v{t0}, v{t1}")
        return out

    def mask_ops(self, S):
        out = []
        for r in range(16):
            c = 8 * (r >> 2) + (r & 3)
            out.append(f"v_cmp_le_i32 vcc, {c}, v{self.v_thr}")
            out.append(f"v_cndmask_b32 v{S+r}, v{self.XT+7}, v{S+r}, vcc")
        return [f"v_mov_b32 v{self.XT+7}, 0xff800000"] + out

    def rowmax_ops(self, S):
        x, y = self.XT, self.XT + 1
        out = [f"v_max3_f32 v{x}, v{S}, v{S+1}, v{S+2}"]
        for r in range(3, 15, 2):
            out.append(f"v_max3_f32 v{x}, v{x}, v{S+r}, v{S+r+1}")
        out.append(f"v_max_f32 v{x}, v{x}, v{S+15}")
        out.append(f"v_mov_b32 v{y}, v{x}")
        out.append(f"v_permlane32_swap_b32 v{x}, v{y}")
        out.append(f"v_max_f32 v{x}, v{x}, v{y}")
        return out

    def slow_path(self, lbl, ret, S, P, Snext):
        b = Block(lbl)
        b.label(lbl)
        b.e("s_nop 15")
        x, f = self.XT, self.XT + 2
        for t in self.rowmax_ops(S): b.e(t)
        b.e(f"v_max_f32 v{x}, 0, v{x}")
        b.e(f"v_sub_f32 v{f}, 0, v{x}")
        b.e(f"v_exp_f32 v{f}, v{f}")
        for r in range(16): b.e(f"v_sub_f32 v{self.NEGM+r}, v{self.NEGM+r}, v{x}")
        for r in range(16): b.e(f"v_sub_f32 v{S+r}, v{S+r}, v{x}")
        if Snext is not None:
            for r in range(16): b.e(f"v_sub_f32 v{Snext+r}, v{Snext+r}, v{x}")
        b.e(f"v_mul_f32 v{self.v_l}, v{self.v_l}, v{f}")
        for r in range(64): b.e(f"v_mul_f32 v{self.O+r}, v{self.O+r}, v{f}")
        for t in self.sm_fast(S, P): b.e(t)
        b.e("s_nop 3")
        b.e(f"s_branch {ret}")
        b.fixed()
        return b

    def step(self, role, var, slows):
        name = f"{role}_{var}"
        b = Block(name)
        b.label(name)
        lg = Q('lgkmcnt', 15)
        S = [self.S0, self.S1]; P = [self.P0, self.P1]
        a_qk = (0, S[0]); b_qk = (1, S[1])
        a_sm = (S[1], P[1]); b_sm = (S[0], P[0])
        a_pv = (0, P[0]); b_pv = (1, P[1])
        spec = {
            'F0':   [(a_qk, None, None), (b_qk, b_sm + ('first',), None)],
            'F0d':  [(a_qk, None, None), (None, b_sm + ('firstdiag',), None)],
            'FULL': [(a_qk, a_sm + ('n',), a_pv), (b_qk, b_sm + ('n',), b_pv)],
            'E1':   [(a_qk, a_sm + ('n',), a_pv), (None, b_sm + ('diag',), b_pv)],
            'E2':   [(None, a_sm + ('diag',), a_pv), (None, None, b_pv)],
            'E3':   [(None, None, a_pv), (None, None, None)],
        }[var]
        last = var in ('E2', 'E3')
        has_bar = (role == 'A') or not last
        ents = []
        for pi, (qk, sm, pv) in enumerate(spec):
            if qk:
                u, Sd = qk
                for s in range(8):
                    c = vr(self.NEGM, 16) if s == 0 else vr(Sd, 16)
                    ents.append(dict(p=pi, rd=('k', u, s), fmt=lambda buf, Sd=Sd, s=s, c=c: f"{MFMA} {vr(Sd,16)}, {vr(buf,4)}, {vr(self.QF+4*s,4)}, {c}"))
            if pv:
                u, Ps = pv
                for s2 in range(2):
                    for db in range(4):
                        o = self.O + 16 * db
                        ents.append(dict(p=pi, rd=('v', u, s2, db), fmt=lambda buf, o=o, Ps=Ps, s2=s2: f"{MFMA} {vr(o,16)}, {vr(buf,4)}, {vr(Ps+4*s2,4)}, {vr(o,16)}"))
        nE = len(ents)
        PD, NB = self.PD, self.NB
        pre = spec[0][0] is not None
        if pre:
            bufidx = [i % NB for i in range(nE)]
            for i in range(PD): lg.issue(('f', i))
            rd = PD
        else:
            bufidx = [(i + PD) % NB for i in range(nE)]
            for i in range(PD): lg.issue(('stale', i))
            rd = 0
        def rtext(i):
            e = ents[i]; buf = self.FB + 4 * bufidx[i]
            return self.kread(e['rd'][1], e['rd'][2], buf) if e['rd'][0] == 'k' else self.vread(e['rd'][1], e['rd'][2], e['rd'][3], buf)
        if not pre:
            while rd < min(PD, nE):
                b.e(rtext(rd)); lg.issue(('f', rd)); rd += 1
        dma = [t for t, _ in self.kv_dma()] if role == 'A' else []
        nxt = [0]
        bar_done = [False]
        def tail_read(i_cur):
            if not has_bar: return
            if not bar_done[0]:
                while dma: b.e(dma.pop(0))
                if role == 'A': b.e("s_waitcnt vmcnt(16)")
                b.e("s_barrier")
                for t in self.adv_rd(): b.e(t)
                bar_done[0] = True
            if last: return
            while nxt[0] < PD:
                users = [i for i in range(nE) if bufidx[i] == nxt[0]]
                if users and max(users) > i_cur: break
                b.e(self.kread(0, nxt[0], self.FB + 4 * nxt[0])); lg.issue(('n', nxt[0])); nxt[0] += 1
                if i_cur < nE - 1: break
        i = 0
        for pi, (qk, sm, pv) in enumerate(spec):
            idx = [k for k in range(nE) if ents[k]['p'] == pi]
            val = []
            post = []
            if sm:
                Ss, Pd, mode = sm
                Snext = qk[1] if qk else None
                if mode.startswith('first'):
                    pre_ops = ["s_nop 7", "s_nop 3"]
                    if 'diag' in mode: pre_ops += self.mask_ops(Ss)
                    pre_ops += self.rowmax_ops(Ss)
                    pre_ops += [f"v_sub_f32 v{self.NEGM+r}, 0, v{self.XT}" for r in range(16)]
                    for t in pre_ops: b.e(t)
                    val = [f"v_sub_f32 v{Ss+r}, v{Ss+r}, v{self.XT}" for r in range(16)] + self.sm_fast(Ss, Pd)
                    post = [f"v_mov_b32 v{self.v_l}, v{self.v_ts}"]
                else:
                    if mode == 'diag': val += self.mask_ops(Ss)
                    val += self.sm_fast(Ss, Pd)
                    sl, ret = f"{name}_slow{pi}", f"{name}_ret{pi}"
                    post = [f"v_cmp_lt_f32 vcc, s{self.s_thr}, v{self.v_ts}", f"s_cbranch_vccnz {sl}", ret + ":",
                            f"v_add_f32 v{self.v_l}, v{self.v_l}, v{self.v_ts}"]
                    slows.append(self.slow_path(sl, ret, Ss, Pd, Snext))
            n = len(idx)
            for m, k in enumerate(idx):
                lg.wait(b, ('f', k))
                b.e(ents[k]['fmt'](self.FB + 4 * bufidx[k]))
                if rd < nE:
                    b.e(rtext(rd)); lg.issue(('f', rd)); rd += 1
                else:
                    tail_read(k)
                if dma:
                    b.e(dma.pop(0))
                    if dma and not dma[0].startswith('buffer'): b.e(dma.pop(0))
                left = n - m
                take = -(-len(val) // left)
                for _ in range(take): b.e(val.pop(0))
            for t in val: b.e(t)
            for t in post:
                if t.endswith(':'): b.label(t[:-1])
                else: b.e(t)
        tail_read(nE)
        assert not dma
        if has_bar and not last: assert nxt[0] == PD
        b.fixed()
        return b

    def xphase(self, role):
        b = Block(f"X{role}")
        b.label(f"X{role}")
        vm, lg = Q('vmcnt', 63), Q('lgkmcnt', 15)
        T = self.T
        stages = []
        for s in range(4):
            stages.append(GStage(s, 'P256', 8 * s, [self.ACC + 16 * c for c in range(4)], s == 0, True, None))
        for f in range(3):
            stages.append(GStage(4 + f, 'FFN', 0, [self.FA + 16 * (f & 1)], True, True, None))
        dm = {}
        for s in range(4):
            dm[s] = dma_p(s, 'P256', self.v_dq, self.S_WQ, self.s_w4096, self.s_t, 128 * s, 0, 8192)
        for f in range(3):
            g = 4 + f
            slot = (g % NSLOT) * SLOT
            ops = []
            for which, (vd, srdw) in enumerate(((self.v_dg, self.S_WG), (self.v_du, self.S_WU))):
                ops.append((f"s_add_u32 m0, s{self.s_w2048}, {slot + which*16384}", None))
                ops.append((f"s_add_u32 s{self.s_t}, s{self.s_fb+f}, {32*2752 - 1024}", None))
                ops.append((f"buffer_load_dwordx4 v{vd}, {sr(srdw,4)}, s{self.s_fb+f} offen lds", ('dma', g)))
                ops.append((f"buffer_load_dwordx4 v{vd}, {sr(srdw,4)}, s{self.s_t} offen offset:1024 lds", ('dma', g)))
            dm[g] = ops
        if role == 'A':
            for j in range(3):
                dm[7 + j] = [(t, ('dma', 7 + j) if tag else None) for t, tag in self.kv_dma()]
        for s in range(3):
            for t, tag in dm.pop(s):
                b.e(t)
                if tag: vm.issue(tag)
            for ks in range(8 * s, 8 * s + 8):
                self.xn_load(b, vm, ks)
        for ks in range(24, 32): self.xn_load(b, vm, ks)
        qops = []
        c = f32(math.log2(math.e) / math.sqrt(128.0))
        qops.append((f"s_mov_b32 s{self.s_t2}, {c}", None))
        for k in range(32):
            a = self.ACC
            qops.append((f"v_mul_f32 v{a+2*k}, s{self.s_t2}, v{a+2*k}", None))
            qops.append((f"v_mul_f32 v{a+2*k+1}, s{self.s_t2}, v{a+2*k+1}", None))
            qops.append((f"v_cvt_pk_bf16_f32 v{a+k}, v{a+2*k}, v{a+2*k+1}", None))
        def hops(f):
            a = self.FA + 16 * (f & 1)
            ops = []
            for r in range(8):
                ops.append((f"v_max_f32 v{a+r}, 0, v{a+r}", None))
                ops.append((f"v_mul_f32 v{a+r}, v{a+r}, v{a+8+r}", None))
            for k in range(4):
                ops.append((f"v_cvt_pk_bf16_f32 v{a+k}, v{a+2*k}, v{a+2*k+1}", None))
            ops.append((f"buffer_store_dwordx4 {vr(a,4)}, v{self.v_l16}, {sr(self.S_WS,4)}, s{self.s_hst+f} offen", 'st'))
            return ops
        fill = {5: hops(0), 6: hops(1)}
        def tail_hook(bb, pend):
            for t, tag in pend:
                bb.e(t)
                if tag is not None: vm.issue(tag)
            pend.clear()
            vm.wait(bb, ('dma', 7))
            bb.e("s_barrier")
            bb.e(f"v_add_u32 v{self.v_fb}, s{self.s_rd}, v{self.v_l16}")
            return []
        vt = {'P256': (T, T + 1, T + 2), 'FFN': (T, T + 1, T + 2)}
        self._qops = qops
        gemm_phase_q(b, vm, lg, stages, dm, self.XN, self.WB, 8, 4, self.VB, self.v_lane, vt, fill, 'a', tail_hook, qops)
        for t, tag in hops(2): b.e(t)
        b.e("s_nop 7")
        for r in range(64): b.e(f"v_mov_b32 v{self.O+r}, 0")
        for r in range(16): b.e(f"v_mov_b32 v{self.NEGM+r}, 0")
        for k in range(self.PD):
            b.e(self.kread(0, k, self.FB + 4 * k))
        b.fixed()
        return b

    def xn_load(self, b, vm, ks):
        so = self.s_act if ks % 8 < 4 else self.s_act2
        b.e(f"buffer_load_dwordx4 {vr(self.XN+4*ks,4)}, v{self.v_l16}, {sr(self.S_WS,4)}, s{so} offen offset:{(ks%4)*1024}")
        vm.issue(('a', ks))
        if ks % 8 == 7:
            b.e(f"s_add_u32 s{self.s_act}, s{self.s_act}, 8192")
            b.e(f"s_add_u32 s{self.s_act2}, s{self.s_act2}, 8192")

    def epilogue(self, role):
        b = Block(f"{role}_epi")
        b.label(f"{role}_epi")
        x, y = self.XT, self.XT + 1
        b.e("s_nop 7")
        b.e(f"v_mov_b32 v{y}, v{self.v_l}")
        b.e(f"v_mov_b32 v{x}, v{self.v_l}")
        b.e(f"v_permlane32_swap_b32 v{x}, v{y}")
        b.e(f"v_add_f32 v{x}, v{x}, v{y}")
        b.e(f"v_rcp_f32 v{x}, v{x}")
        b.e(f"""s_mul_i32 s{self.s_act}, s{self.s_g}, {NKS3*1024}
                s_lshl_b32 s{self.s_t}, s{self.s_h}, 13
                s_add_u32 s{self.s_act}, s{self.s_act}, s{self.s_t}
                s_add_u32 s{self.s_act}, s{self.s_act}, {ACT_OFF}
                s_add_u32 s{self.s_act2}, s{self.s_act}, 4096""")
        for f in range(8):
            a = self.O + 8 * f
            for r in range(8): b.e(f"v_mul_f32 v{a+r}, v{a+r}, v{x}")
            for k in range(4): b.e(f"v_cvt_pk_bf16_f32 v{a+k}, v{a+2*k}, v{a+2*k+1}")
            so = self.s_act if f < 4 else self.s_act2
            b.e(f"buffer_store_dwordx4 {vr(a,4)}, v{self.v_l16}, {sr(self.S_WS,4)}, s{so} offen offset:{(f%4)*1024}")
        if role == 'B':
            b.e("s_endpgm")
        else:
            b.label("A_prod")
            b.e(f"s_add_u32 s{self.s_t}, s{self.s_j}, 3")
            b.e(f"s_cmp_gt_u32 s{self.s_t}, s{self.s_nT}")
            b.e("s_cbranch_scc1 A_ptail")
            for t, _ in self.kv_dma(): b.e(t)
            b.e("s_waitcnt vmcnt(16)")
            b.e("s_barrier")
            b.e(f"s_add_u32 s{self.s_j}, s{self.s_j}, 1")
            b.e("s_branch A_prod")
            b.label("A_ptail")
            b.e(f"s_add_u32 s{self.s_t}, s{self.s_j}, 2")
            b.e(f"s_cmp_lg_u32 s{self.s_t}, s{self.s_nT}")
            b.e("s_cbranch_scc1 A_pfin")
            b.e("s_waitcnt vmcnt(8)")
            b.e("s_barrier")
            b.label("A_pfin")
            b.e("s_waitcnt vmcnt(0)")
            b.e("s_endpgm")
        b.fixed()
        return b

    def gen(self):
        b = Block('k2')
        T = self.T
        b.e(f"""s_cmp_ge_u32 s2, 256
                s_cbranch_scc1 K2_end
                s_load_dwordx2 s[4:5], s[0:1], 16
                s_load_dwordx4 s[8:11], s[0:1], 56
                s_load_dwordx2 s[12:13], s[0:1], 96
                v_lshrrev_b32 v{T}, 6, v0
                v_and_b32 v{self.v_lane}, 63, v0
                s_and_b32 s{self.s_t}, s2, 7
                v_readfirstlane_b32 s{self.s_w}, v{T}
                s_lshr_b32 s{self.s_i}, s2, 3
                s_and_b32 s{self.s_h}, s{self.s_i}, 3
                s_lshl_b32 s{self.s_t}, s{self.s_t}, 2
                s_add_u32 s{self.s_h}, s{self.s_h}, s{self.s_t}
                s_lshr_b32 s{self.s_i}, s{self.s_i}, 2
                s_lshl_b32 s{self.s_w4096}, s{self.s_w}, 12
                s_lshl_b32 s{self.s_w2048}, s{self.s_w}, 11
                s_lshl_b32 s{self.s_h256}, s{self.s_h}, 8
                v_lshlrev_b32 v{self.v_l16}, 4, v{self.v_lane}
                s_waitcnt lgkmcnt(0)""")
        srd(b, self.S_WQ, 4, 4194304); srd(b, self.S_WG, 8, 512 * 2752); srd(b, self.S_WU, 10, 512 * 2752); srd(b, self.S_WS, 12, ACT_END)
        b.e(f"""s_lshl_b32 s{self.s_t}, s{self.s_i}, 2
                s_add_u32 s{self.s_g}, s{self.s_t}, s{self.s_w}
                s_sub_u32 s{self.s_t2}, 56, s{self.s_t}
                s_add_u32 s{self.s_t2}, s{self.s_t2}, s{self.s_w}
                s_cmp_lt_u32 s{self.s_w}, 4
                s_cselect_b32 s{self.s_g}, s{self.s_g}, s{self.s_t2}
                s_lshl_b32 s{self.s_t}, s{self.s_i}, 1
                s_sub_u32 s{self.s_nT}, 32, s{self.s_t}
                s_lshl_b32 s{self.s_act}, s{self.s_g}, 15
                s_add_u32 s{self.s_act2}, s{self.s_act}, 4096
                s_mov_b32 s{self.s_thr}, {f32(self.THR)}
                s_mov_b32 s{self.s_rd}, {(7 % NSLOT) * SLOT}
                s_mov_b32 s{self.s_wr}, {(7 % NSLOT) * SLOT}
                s_lshl_b32 s{self.s_koff}, s{self.s_h}, 19
                s_add_u32 s{self.s_koff}, s{self.s_koff}, s{self.s_w4096}
                s_add_u32 s{self.s_voff}, s{self.s_koff}, {VF_OFF - 16384}
                s_add_u32 s{self.s_koff}, s{self.s_koff}, {KF_OFF}
                s_sub_u32 s{self.s_nfull}, s{self.s_g}, 1
                s_lshr_b32 s{self.s_nfull}, s{self.s_nfull}, 1
                s_lshr_b32 s{self.s_j}, s{self.s_g}, 1
                s_add_u32 s{self.s_j}, s{self.s_j}, 2""")
        b.e(f"s_mul_i32 s{self.s_t2}, s{self.s_g}, {NKS3*1024}")
        b.e(f"s_add_u32 s{self.s_t2}, s{self.s_t2}, {ACT_OFF + 256*1024}")
        for f in range(3):
            b.e(f"s_add_u32 s{self.s_t}, s{self.s_h}, {32*f}")
            b.e(f"s_lshl_b32 s{self.s_fb+f}, s{self.s_t}, 5")
            b.e(f"s_lshl_b32 s{self.s_hst+f}, s{self.s_t}, 10")
            b.e(f"s_add_u32 s{self.s_hst+f}, s{self.s_hst+f}, s{self.s_t2}")
        b.e(f"""s_cmp_lt_u32 s{self.s_h}, 22
                s_cselect_b32 s{self.s_fb+2}, s{self.s_fb+2}, s{self.s_fb}
                s_cselect_b32 s{self.s_hst+2}, s{self.s_hst+2}, {ACT_END}""")
        dma_voff_p(b, 'P256', self.v_dq, self.v_lane, T, self.s_w, self.s_h256, 8192)
        b.e(f"""v_lshrrev_b32 v{T}, 1, v{self.v_lane}
                v_mov_b32 v{T+2}, s{self.s_w}
                v_lshl_add_u32 v{T}, v{T+2}, 6, v{T}
                v_and_b32 v{T+1}, 1, v{self.v_lane}
                v_lshlrev_b32 v{T+1}, 4, v{T+1}
                v_mul_u32_u24 v{T+2}, 2752, v{T}
                v_add_u32 v{self.v_dg}, v{T+2}, v{T+1}
                v_xor_b32 v{T}, 4, v{T}
                v_mul_u32_u24 v{T+2}, 2752, v{T}
                v_add_u32 v{self.v_du}, v{T+2}, v{T+1}
                v_and_b32 v{T}, 31, v{self.v_lane}
                v_lshrrev_b32 v{T+1}, 5, v{self.v_lane}
                v_lshlrev_b32 v{T+1}, 2, v{T+1}
                v_sub_u32 v{self.v_thr}, v{T}, v{T+1}
                s_cmp_ge_u32 s{self.s_w}, 4
                s_cbranch_scc1 XB""")
        b.fixed()
        out = [b]
        slows = []
        for role in ('A', 'B'):
            x = self.xphase(role)
            blk = {v: self.step(role, v, slows) for v in ('F0', 'F0d', 'FULL', 'E1', 'E2', 'E3')}
            epi = self.epilogue(role)
            def glue(text):
                g = Block(); g.e("s_nop 7"); g.e(text) if False else None
                return g
            c0 = Block(); c0.e(f"s_cmp_eq_u32 s{self.s_g}, 0"); c0.e(f"s_cbranch_scc1 {role}_F0d")
            c1 = Block(); c1.e("s_nop 7"); c1.e(f"s_cmp_eq_u32 s{self.s_nfull}, 0"); c1.e(f"s_cbranch_scc1 {role}_tail")
            c2 = Block(); c2.e(f"s_sub_u32 s{self.s_nfull}, s{self.s_nfull}, 1"); c2.e(f"s_cmp_lg_u32 s{self.s_nfull}, 0"); c2.e(f"s_cbranch_scc1 {role}_FULL")
            c2.label(f"{role}_tail"); c2.e(f"s_bitcmp1_b32 s{self.s_g}, 0"); c2.e(f"s_cbranch_scc1 {role}_E2")
            c3 = Block(); c3.e(f"s_branch {role}_epi")
            c4 = Block(); c4.e(f"s_branch {role}_E3")
            for p, n in (('FULL', 'FULL'), ('FULL', 'E1'), ('FULL', 'E2'), ('E1', 'E3'), ('F0d', 'E3')):
                pad = seam_pad(blk[p], blk[n])
                assert pad <= (0 if (p, n) == ('E1', 'E3') else 1 if p == 'F0d' else 3), (p, n, pad)
            seq = [x, c0, blk['F0'], c1, blk['FULL'], c2, blk['E1'], blk['E3'], epi, blk['E2'], c3, blk['F0d'], c4]
            out += seq
        out += slows
        e = Block(); e.label("K2_end"); e.e("s_endpgm")
        out.append(e)
        return out

def gemm_phase_q(b, vm, lg, stages, dm, act0, wbuf, nbuf, pd, vbase, vlane, vt, fill, tag, tail_hook, qops):
    fill = dict(fill)
    fill[('pre', 4)] = qops
    gemm_phase(b, vm, lg, stages, dm, act0, wbuf, nbuf, pd, vbase, vlane, vt, fill, tag, tail_hook)

def gen_k3():
    b = Block('k3')
    vm, lg = Q('vmcnt', 63), Q('lgkmcnt', 15)
    S_X, S_W, S_WS, S_O = 16, 20, 24, 28
    s_mt, s_nt, s_w, s_t, s_t2, s_a0, s_a1, s_wo, s_reg, s_start = 36, 37, 38, 39, 40, 41, 42, 43, 44, 45
    ACC, AB, WF = 0, 64, 128
    v_l16, v_lane, v_d0, v_d1, VB, XR, T = 160, 161, 162, 163, 164, 168, 176
    NK, D, RING = 43, 6, 8
    b.e(f"""s_cmp_ge_u32 s2, 256
            s_cbranch_scc1 K3_end
            s_load_dwordx2 s[4:5], s[0:1], 0
            s_load_dwordx2 s[6:7], s[0:1], 40
            s_load_dwordx4 s[8:11], s[0:1], 72
            s_load_dwordx2 s[12:13], s[0:1], 96
            v_lshrrev_b32 v{T}, 6, v0
            v_and_b32 v{v_lane}, 63, v0
            s_and_b32 s{s_t}, s2, 7
            v_readfirstlane_b32 s{s_w}, v{T}
            s_lshr_b32 s{s_nt}, s2, 3
            s_and_b32 s{s_mt}, s{s_nt}, 3
            s_lshl_b32 s{s_t}, s{s_t}, 2
            s_add_u32 s{s_mt}, s{s_mt}, s{s_t}
            s_lshr_b32 s{s_nt}, s{s_nt}, 2
            v_lshlrev_b32 v{v_l16}, 4, v{v_lane}
            s_lshl_b32 s{s_reg}, s{s_w}, 14
            s_waitcnt lgkmcnt(0)""")
    srd(b, S_X, 4, 2097152); srd(b, S_WS, 12, ACT_END); srd(b, S_O, 10, 2097152)
    b.e(f"""s_mul_i32 s{s_start}, s{s_w}, 43
            s_cmp_eq_u32 s{s_w}, 5
            s_cselect_b32 s{s_start}, 214, s{s_start}
            s_cmp_ge_u32 s{s_w}, 6
            s_cselect_b32 s{s_t}, 2, 0
            s_sub_u32 s{s_start}, s{s_start}, s{s_t}
            s_add_u32 s{s_t2}, s{s_start}, 43
            s_cmp_eq_u32 s{s_w}, 4
            s_cselect_b32 s{s_t2}, 214, s{s_t2}
            s_cmp_eq_u32 s{s_w}, 5
            s_cselect_b32 s{s_t2}, 256, s{s_t2}
            s_cmp_ge_u32 s{s_w}, 6
            s_cselect_b32 s{s_t}, 256, 0
            s_cselect_b32 s{S_W}, s8, s6
            s_cselect_b32 s{S_W+1}, s9, s7
            s_and_b32 s{S_W+1}, s{S_W+1}, 0xffff
            s_sub_u32 s{s_wo}, s{s_start}, s{s_t}
            s_lshl_b32 s{s_wo}, s{s_wo}, 14
            s_sub_u32 s{s_t2}, s{s_t2}, s{s_t}
            s_lshl_b32 s{S_W+2}, s{s_t2}, 14
            s_mov_b32 s{S_W+3}, 0x20000
            s_lshl_b32 s{s_t}, s{s_mt}, 1
            s_mul_i32 s{s_a0}, s{s_t}, {NKS3}
            s_add_u32 s{s_a0}, s{s_a0}, s{s_start}
            s_lshl_b32 s{s_a0}, s{s_a0}, 10
            s_add_u32 s{s_a0}, s{s_a0}, {ACT_OFF}
            s_add_u32 s{s_a1}, s{s_a0}, {NKS3*1024}""")
    v_xo = T + 8
    b.e(f"""v_lshrrev_b32 v{T}, 3, v{v_lane}
            v_lshlrev_b32 v{T}, 10, v{T}
            v_and_b32 v{T+1}, 7, v{v_lane}
            v_lshl_add_u32 v{v_xo}, v{T+1}, 4, v{T}
            s_lshl_b32 s{s_t}, s{s_mt}, 16
            s_lshl_b32 s{s_t2}, s{s_w}, 13
            s_add_u32 s{s_t}, s{s_t}, s{s_t2}
            s_lshl_b32 s{s_t2}, s{s_nt}, 7
            s_add_u32 s46, s{s_t}, s{s_t2}
            buffer_load_dwordx4 {vr(XR,4)}, v{v_xo}, {sr(S_X,4)}, s46 offen""")
    vm.issue('x')
    b.e(f"""v_lshrrev_b32 v{T}, 3, v{v_lane}
            v_and_b32 v{T+1}, 7, v{v_lane}
            v_bfe_u32 v{T+2}, v{v_lane}, 4, 1
            v_lshlrev_b32 v{T+2}, 2, v{T+2}
            v_xor_b32 v{T+1}, v{T+1}, v{T+2}
            v_lshlrev_b32 v{T}, 10, v{T}
            v_lshl_add_u32 v{T}, v{T+1}, 4, v{T}
            v_add_u32 v{v_d0}, s{s_t2}, v{T}
            v_add_u32 v{v_d1}, {8192-1024}, v{v_d0}""")
    b.e(f"""v_bfe_u32 v{T}, v{v_lane}, 2, 2
            v_and_b32 v{T+1}, 3, v{v_lane}
            v_lshlrev_b32 v{T+1}, 3, v{T+1}
            v_bfe_u32 v{T+2}, v{v_lane}, 4, 1
            v_lshl_add_u32 v{T+1}, v{T+2}, 5, v{T+1}
            v_lshrrev_b32 v{T+2}, 5, v{v_lane}
            v_lshl_add_u32 v{T+2}, v{T+2}, 2, v{T}
            v_lshl_add_u32 v{T+1}, v{T+2}, 7, v{T+1}
            v_add_u32 v{T+1}, s{s_reg}, v{T+1}
            v_lshrrev_b32 v{T}, 1, v{T}
            v_lshl_add_u32 v{VB}, v{T}, 6, v{T+1}
            v_xor_b32 v{T}, 1, v{T}
            v_lshl_add_u32 v{VB+1}, v{T}, 6, v{T+1}""")
    def issue(k):
        ops = []
        ops.append((f"s_add_u32 m0, s{s_reg}, {(k % RING) * 2048}", None))
        ops.append((f"buffer_load_dwordx4 {vr(AB+8*(k%8),4)}, v{v_l16}, {sr(S_WS,4)}, s{s_a0} offen offset:{(k%4)*1024}", ('a', k)))
        ops.append((f"buffer_load_dwordx4 v{v_d0}, {sr(S_W,4)}, s{s_wo} offen lds", ('w', k)))
        ops.append((f"buffer_load_dwordx4 {vr(AB+8*(k%8)+4,4)}, v{v_l16}, {sr(S_WS,4)}, s{s_a1} offen offset:{(k%4)*1024}", ('a', k)))
        ops.append((f"buffer_load_dwordx4 v{v_d1}, {sr(S_W,4)}, s{s_wo} offen offset:1024 lds", ('w', k)))
        ops.append((f"s_add_u32 s{s_wo}, s{s_wo}, 16384", None))
        if k % 4 == 3:
            ops.append((f"s_add_u32 s{s_a0}, s{s_a0}, 4096", None))
            ops.append((f"s_add_u32 s{s_a1}, s{s_a1}, 4096", None))
        return ops
    def do(ops):
        for t, tag in ops:
            b.e(t)
            if tag: vm.issue(tag)
    def wreads(k):
        wf = WF + 8 * (k % 2)
        vm.wait(b, ('w', k))
        for cb in range(2):
            for u in range(2):
                b.e(f"ds_read_b64_tr_b16 v[{wf+4*cb+2*u}:{wf+4*cb+2*u+1}], v{VB+cb} offset:{(k%RING)*2048 + u*1024}")
                lg.issue(('w', k, cb))
    for k in range(D): do(issue(k))
    wreads(0)
    for k in range(NK):
        if k + 1 < NK: wreads(k + 1)
        ops = issue(k + D) if k + D < NK else []
        wf = WF + 8 * (k % 2)
        vm.wait(b, ('a', k))
        n = 0
        for nb in range(2):
            lg.wait(b, ('w', k, nb))
            for mb in range(2):
                acc = ACC + 16 * (2 * nb + mb)
                c = "0" if k == 0 else vr(acc, 16)
                b.e(f"{MFMA} {vr(acc,16)}, {vr(wf+4*nb,4)}, {vr(AB+8*(k%8)+4*mb,4)}, {c}")
                do(ops[2*n:2*n+2]); n += 1
        do(ops[8:])
    PITCH = 272
    WREG = 64 * PITCH
    b.e("s_barrier")
    b.e(f"""v_and_b32 v{T}, 31, v{v_lane}
            v_mul_u32_u24 v{T}, {PITCH}, v{T}
            v_lshrrev_b32 v{T+1}, 5, v{v_lane}
            v_lshl_add_u32 v{T}, v{T+1}, 4, v{T}
            s_mul_i32 s{s_t}, s{s_w}, {WREG}
            v_add_u32 v{T}, s{s_t}, v{T}""")
    for nb in range(2):
        for mb in range(2):
            acc = ACC + 16 * (2 * nb + mb)
            for j in range(4):
                off = mb * 32 * PITCH + (32 * nb + 8 * j) * 4
                b.e(f"ds_write_b128 v{T}, {vr(acc+4*j,4)} offset:{off}")
    b.e(f"""v_lshrrev_b32 v{T+2}, 3, v{v_lane}
            v_mov_b32 v{T+3}, s{s_w}
            v_lshl_add_u32 v{T+2}, v{T+3}, 3, v{T+2}
            v_mul_u32_u24 v{T+2}, {PITCH}, v{T+2}
            v_and_b32 v{T+3}, 7, v{v_lane}
            v_lshl_add_u32 v{T+2}, v{T+3}, 5, v{T+2}
            v_add_u32 v{T+3}, {4*WREG}, v{T+2}
            s_waitcnt lgkmcnt(0)
            s_barrier""")
    R = AB
    for p in range(8):
        va = T + 2 if p < 4 else T + 3
        for hh in range(2):
            b.e(f"ds_read_b128 {vr(R+8*p+4*hh,4)}, v{va} offset:{(p%4)*WREG + 16*hh}")
    X = ACC
    vm.wait(b, 'x')
    for i in range(4):
        b.e(f"v_lshlrev_b32 v{X+2*i}, 16, v{XR+i}")
        b.e(f"v_and_b32 v{X+2*i+1}, 0xffff0000, v{XR+i}")
    for p in range(8):
        b.e(f"s_waitcnt lgkmcnt({14-2*p})")
        for i in range(8):
            b.e(f"v_add_f32 v{X+i}, v{X+i}, v{R+8*p+i}")
    for i in range(4):
        b.e(f"v_cvt_pk_bf16_f32 v{XR+i}, v{X+2*i}, v{X+2*i+1}")
    b.e(f"buffer_store_dwordx4 {vr(XR,4)}, v{v_xo}, {sr(S_O,4)}, s46 offen")
    b.label("K3_end")
    b.e("s_endpgm")
    b.fixed()
    return b

def main(path):
    ref = open("cdna_kernels/" + NAME + ".s.ref").read().split('\n')
    hdr = [l for l in ref if l.startswith(';') and '@launch' not in l and 'Override launch' not in l and 'grid=ceil' not in l]
    out = "\n".join(hdr) + "\n"
    out += f"; @launch kernel=kvproj_kernel grid=(256,1,1) block=(512,1,1) lds={LDS_BYTES}\n"
    out += f"; @launch kernel=attn_kernel grid=(256,1,1) block=(512,1,1) lds={LDS_BYTES}\n"
    out += f"; @launch kernel=outproj_kernel grid=(256,1,1) block=(512,1,1) lds={LDS_BYTES}\n"
    out += '.amdgcn_target "amdgcn-amd-amdhsa--gfx950"\n.text\n'
    out += khead("kvproj_kernel") + gen_k1().text()
    out += khead("attn_kernel") + "".join(x.text() for x in K2().gen())
    out += khead("outproj_kernel") + gen_k3().text()
    out += kd("kvproj_kernel") + kd("attn_kernel") + kd("outproj_kernel")
    open(path, "w").write(out)

if __name__ == "__main__":
    main(sys.argv[1] if len(sys.argv) > 1 else "cdna_kernels/" + NAME + ".s")
```
